```python
import torch

def _softmax(x, axis=-1):
    return torch.softmax(x, dim=axis)
def _gelu(x):
    return torch.nn.functional.gelu(x, approximate="tanh")
def _silu(x):
    return torch.nn.functional.silu(x)
def _sigmoid(x):
    return torch.sigmoid(x)
def _layernorm(x, axis=-1, eps=1e-5):
    m = x.mean(dim=axis, keepdim=True)
    v = x.var(dim=axis, keepdim=True, unbiased=False)
    return (x - m) / torch.sqrt(v + eps)
def _scatter_add(tgt, idx, src, axis=0):
    return tgt.clone().index_add_(axis, idx, src)
def _segment_sum(src, seg, n):
    out = torch.zeros((n,) + src.shape[1:], dtype=src.dtype)
    return out.index_add_(0, seg, src)
def _pad(x, pw):
    flat = tuple(v for pair in reversed(pw) for v in pair)
    return torch.nn.functional.pad(x, flat)

kernel_name = 'sequential_preLN__grouped_kv_mqa__geglu_ffn__prompt'

def setup_inputs():

    _w = (lambda a: (lambda t: t.to(torch.bfloat16) if t.is_floating_point() else t)(torch.as_tensor(a)))
    def _A_setup():
        B, S, D, H = 1, 2048, 512, 32
        Dh = D // H
        return {
            "x": _w((lambda *s: torch.randn(*s, dtype=torch.bfloat16) * 0.05)(B, S, D)),
            "wq": _w((lambda *s: torch.randn(*s, dtype=torch.bfloat16) * 0.05)(D, H * Dh)),
            "wk": _w((lambda *s: torch.randn(*s, dtype=torch.bfloat16) * 0.05)(D, Dh)),
            "wv": _w((lambda *s: torch.randn(*s, dtype=torch.bfloat16) * 0.05)(D, Dh)),
            "wo": _w((lambda *s: torch.randn(*s, dtype=torch.bfloat16) * 0.05)(H * Dh, D)),
        }
    _A_in = _A_setup()

    def _B_setup():
        B, S, D, F = 1, 2048, 512, 1792
        return {
            "x": _w((lambda *s: torch.randn(*s, dtype=torch.bfloat16) * 0.05)(B, S, D)),
            "w_gate": _w((lambda *s: torch.randn(*s, dtype=torch.bfloat16) * 0.05)(D, F)),
            "w_up": _w((lambda *s: torch.randn(*s, dtype=torch.bfloat16) * 0.05)(D, F)),
            "w_down": _w((lambda *s: torch.randn(*s, dtype=torch.bfloat16) * 0.05)(F, D)),
        }
    _B_in = _B_setup()

    return {
        "A_x": _A_in["x"],
        "A_wq": _A_in["wq"],
        "A_wk": _A_in["wk"],
        "A_wv": _A_in["wv"],
        "A_wo": _A_in["wo"],
        "B_x": _B_in["x"],
        "B_w_gate": _B_in["w_gate"],
        "B_w_up": _B_in["w_up"],
        "B_w_down": _B_in["w_down"],
    }

def reference(A_x, A_wq, A_wk, A_wv, A_wo, B_x, B_w_gate, B_w_up, B_w_down):
    def _A_ref(x, wq, wk, wv, wo):
        B, S, D = x.shape
        H = 32
        Dh = D // H
        q = (lambda x, *d: x.permute(*d))((x @ wq).reshape(B, S, H, Dh), 0, 2, 1, 3)
        k = x @ wk
        v = x @ wv
        scores = torch.einsum("bhqd,bkd->bhqk", q, k) * (Dh ** -0.5)
        p = _softmax(scores, axis=-1)
        o = torch.einsum("bhqk,bkd->bhqd", p, v)
        return (lambda x, *d: x.permute(*d))(o, 0, 2, 1, 3).reshape(B, S, H * Dh) @ wo

    def _B_ref(x, w_gate, w_up, w_down):
        return (_gelu(x @ w_gate) * (x @ w_up)) @ w_down

    x = A_x
    h = x + _A_ref(_layernorm(x, axis=-1), A_wq, A_wk, A_wv, A_wo)
    h2 = h + _B_ref(_layernorm(h, axis=-1), B_w_gate, B_w_up, B_w_down)
    return h2
```

```python
import sys, os, subprocess, struct, ctypes
sys.path.insert(0, "cdna_kernels")
import numpy as np

HDR = '.amdgcn_target "amdgcn-amd-amdhsa--gfx950"\n.text\n'

def kernel(name, body, iters, nvgpr=256, init="", accum=None):
    accum = accum or min(256, (nvgpr + 3)//4*4)
    return f"""
.globl {name}
.p2align 8
.type {name},@function
{name}:
    s_load_dwordx2 s[4:5], s[0:1], 0
    v_lshrrev_b32 v1, 6, v0
    s_nop 1
    v_readfirstlane_b32 s20, v1
    s_waitcnt lgkmcnt(0)
    s_mov_b32 s8, s4
    s_mov_b32 s9, s5
    s_mov_b32 s10, 0x1000000
    s_mov_b32 s11, 0x00020000
{init}
    s_barrier
    s_memtime s[12:13]
    s_waitcnt lgkmcnt(0)
    s_mov_b32 s16, {iters}
.p2align 6
{name}_loop:
{body}
    s_sub_u32 s16, s16, 1
    s_cmp_lg_u32 s16, 0
    s_cbranch_scc1 {name}_loop
    s_nop 15
    s_nop 15
    s_memtime s[14:15]
    s_waitcnt lgkmcnt(0)
    s_sub_u32 s14, s14, s12
    s_lshl_b32 s17, s2, 4
    s_add_u32 s17, s17, s20
    s_lshl_b32 s17, s17, 2
    v_mov_b32 v2, s14
    v_mov_b32 v3, s17
    v_and_b32 v4, 63, v0
    v_cmp_eq_u32 vcc, 0, v4
    s_and_saveexec_b64 s[18:19], vcc
    buffer_store_dword v2, v3, s[8:11], 0 offen
    s_waitcnt vmcnt(0)
    s_endpgm
.section .rodata,"a"
.p2align 6
.amdhsa_kernel {name}
  .amdhsa_next_free_vgpr {nvgpr}
  .amdhsa_next_free_sgpr 64
  .amdhsa_accum_offset {accum}
  .amdhsa_group_segment_fixed_size 0
  .amdhsa_kernarg_size 8
  .amdhsa_user_sgpr_count 2
  .amdhsa_user_sgpr_kernarg_segment_ptr 1
  .amdhsa_system_sgpr_workgroup_id_x 1
.end_amdhsa_kernel
.text
"""

def meta(names, maxwg=1024):
    s = "\n.amdgpu_metadata\n---\namdhsa.version: [1, 2]\namdhsa.kernels:\n"
    for n in names:
        s += f"""  - .name: {n}
    .symbol: {n}.kd
    .kernarg_segment_size: 8
    .kernarg_segment_align: 8
    .group_segment_fixed_size: 0
    .private_segment_fixed_size: 0
    .wavefront_size: 64
    .sgpr_count: 70
    .vgpr_count: 256
    .max_flat_workgroup_size: {maxwg}
    .args:
      - {{.name: kernargs, .size: 8, .offset: 0, .value_kind: by_value}}
"""
    s += "...\n.end_amdgpu_metadata\n"
    return s

def build(path, kernels):
    src = HDR + "".join(t for _, t in kernels) + meta([n for n, _ in kernels])
    open(path + ".s", "w").write(src)
    r = subprocess.run(["clang", "-x", "assembler", "-target", "amdgcn-amd-amdhsa",
                        "-mcpu=gfx950", path + ".s", "-o", path + ".co"], capture_output=True, text=True)
    if r.returncode:
        print(r.stderr)
        sys.exit(1)

def run(path, name, grid, block, lds=0, reps=3):
    import cdna_launch as cl
    k = cl.AsmKernel(path + ".co", name, check=False)
    buf = cl.DeviceBuffer(0x1000000)
    res = None
    for _ in range(reps):
        cl._check(cl._hip.hipMemset(ctypes.c_void_p(buf.ptr), 0, 0x1000000))
        k.launch((grid, 1, 1), (block, 1, 1), struct.pack("<Q", buf.ptr), lds)
        cl._check(cl._hip.hipDeviceSynchronize())
        a = buf.to_numpy(np.uint32, (0x1000000 // 4,))
        res = a[: grid * 16].reshape(grid, 16)[:, : block // 64]
    k.unload()
    return res
```

```python
import sys
from mb import *
init = """    v_and_b32 v5, 63, v0
    v_lshlrev_b32 v6, 4, v5
    v_add_u32 v6, 0x10000, v6
    v_and_b32 v7, 31, v5
    v_lshrrev_b32 v8, 5, v5
    v_mul_u32_u24 v8, 272, v8
    v_lshl_add_u32 v9, v7, 4, v8
    v_add_u32 v9, 0x10000, v9
    v_mov_b32 v10, 0x40000000
    v_cmp_lt_u32 vcc, 16, v7
    s_nop 1
    v_cndmask_b32 v11, v9, v10, vcc
    v_min_u32 v12, 16, v7
    v_lshl_add_u32 v12, v12, 4, v8
    v_add_u32 v12, 0x10000, v12
    s_mov_b32 s40, 0x0001ffff
    s_mov_b32 s41, 0x0001ffff
    v_lshlrev_b32 v13, 3, v5
    v_add_u32 v13, 0x10000, v13
"""
def loads(v, n=16, pre="", post="", op="dwordx4", w=4):
    return pre + "\n".join(f"    buffer_load_{op} v[{16+4*i}:{16+4*i+w-1}], v{v}, s[8:11], 0 offen offset:{(i%3)*1088}" for i in range(n)) + "\n    s_waitcnt vmcnt(8)\n" + post
B = {
 "full": loads(6),
 "oob": loads(11),
 "dup": loads(12),
 "mask": loads(9, pre="    s_mov_b64 exec, s[40:41]\n", post="    s_mov_b64 exec, -1\n"),
 "x2": loads(13, op="dwordx2", w=2),
 "wake": "    s_wakeup\n    s_nop 0",
}
ks = [(n + "_kernel", kernel(n + "_kernel", b, 100, nvgpr=128, init=init)) for n, b in B.items()]
build("mb16", ks)
if len(sys.argv) > 1:
    for n in B:
        r = run("mb16", n + "_kernel", 256, 256, reps=2)
        print(f"{n:8s} cycles per load instr per CU {np.median(r)/100/16/4:6.1f}", flush=True)
```
